```python
import torch

def _softmax(x, axis=-1):
    return torch.softmax(x, dim=axis)

def _gelu(x):
    return torch.nn.functional.gelu(x, approximate='tanh')

def _silu(x):
    return torch.nn.functional.silu(x)

def _sigmoid(x):
    return torch.sigmoid(x)

def _layernorm(x, axis=-1, eps=1e-05):
    m = x.mean(dim=axis, keepdim=True)
    v = x.var(dim=axis, keepdim=True, unbiased=False)
    return (x - m) / torch.sqrt(v + eps)

def _scatter_add(tgt, idx, src, axis=0):
    return tgt.clone().index_add_(axis, idx, src)

def _segment_sum(src, seg, n):
    out = torch.zeros((n,) + src.shape[1:], dtype=src.dtype)
    return out.index_add_(0, seg, src)

def _pad(x, pw):
    flat = tuple((v for pair in reversed(pw) for v in pair))
    return torch.nn.functional.pad(x, flat)
kernel_name = 'standalone__autoregressive_conv_wavernn__speech'

def setup_inputs():

    _w = lambda a: (lambda t: t.to(torch.bfloat16) if t.is_floating_point() else t)(torch.as_tensor(a))
    B, T, D, K = (2, 4000, 256, 3)
    return {'x': _w((lambda *s: torch.randn(*s, dtype=torch.bfloat16) * 0.1)(B, T, D)), 'w': _w((lambda *s: torch.randn(*s, dtype=torch.bfloat16) * 0.1)(K, D, 2 * D))}

def reference(x, w):
    B, T, D = x.shape
    K = w.shape[0]
    dil = 2
    pad = (K - 1) * dil
    xp = _pad(x, ((0, 0), (pad, 0), (0, 0)))
    h = torch.einsum('btd,de->bte', xp[:, 0:T, :], w[0])
    for i in range(1, K):
        h = h + torch.einsum('btd,de->bte', xp[:, i * dil:i * dil + T, :], w[i])
    f, g = (h[..., :D].clone(), h[..., D:].clone())
    return torch.tanh(f) * _sigmoid(g)
```

```python
KNAME = "standalone__autoregressive_conv_wavernn__speech"

HEADER = """; Kernarg layout for this problem (40 bytes, ptrs only, base s[0:1]):
"""


class Asm:
    def __init__(self):
        self.lines = []
        self.vm = []
        self.lg = []

    def __call__(self, s):
        for l in s.strip("\n").split("\n"):
            self.lines.append("    " + l.strip())

    def label(self, name):
        self.lines.append(name + ":")

    def comment(self, s):
        self.lines.append("    ; " + s)

    def vmem(self, s, tag):
        self(s)
        self.vm.append(tag)

    def lds(self, s, tag):
        self(s)
        self.lg.append(tag)

    @staticmethod
    def _count(lst, tags):
        last = -1
        for i, t in enumerate(lst):
            if t in tags:
                last = i
        if last < 0:
            return None
        return len(lst) - 1 - last

    def wait(self, vm=None, lg=None):
        parts = []
        if vm is not None:
            n = (0 if self.vm else None) if vm == "all" else self._count(self.vm, vm)
            if n is not None:
                n = min(n, 63)
                parts.append(f"vmcnt({n})")
                self.vm = self.vm[len(self.vm) - n:] if n else []
        if lg is not None:
            n = (0 if self.lg else None) if lg == "all" else self._count(self.lg, lg)
            if n is not None:
                n = min(n, 15)
                parts.append(f"lgkmcnt({n})")
                self.lg = self.lg[len(self.lg) - n:] if n else []
        if parts:
            self("s_waitcnt " + " ".join(parts))

    def text(self):
        return "\n".join(self.lines) + "\n"


def wrap(body, grid, block, lds, vgpr, accum, sgpr=102, name=KNAME + "_kernel", extra_desc=""):
    s = HEADER
    s += f"; @launch grid=({grid},1,1) block=({block},1,1) lds={lds}\n"
    s += '.amdgcn_target "amdgcn-amd-amdhsa--gfx950"\n.text\n'
    s += f".globl {name}\n.p2align 8\n.type {name},@function\n{name}:\n"
    s += body
    s += '.section .rodata,"a"\n.p2align 6\n'
    s += f".amdhsa_kernel {name}\n"
    s += f"  .amdhsa_next_free_vgpr {vgpr}\n  .amdhsa_next_free_sgpr {sgpr}\n  .amdhsa_accum_offset {accum}\n"
    s += "  .amdhsa_group_segment_fixed_size 0\n  .amdhsa_kernarg_size 40\n"
    s += "  .amdhsa_user_sgpr_count 2\n  .amdhsa_user_sgpr_kernarg_segment_ptr 1\n"
    s += "  .amdhsa_system_sgpr_workgroup_id_x 1\n"
    s += extra_desc
    s += ".end_amdhsa_kernel\n"
    return s
```

```python
import sys
from asmlib import Asm, wrap

NSLOT = 7
XBASE = 0
XSL = 136 * 128
WBASE = 4 * XSL
WSL = 12288
LDS = WBASE + NSLOT * WSL

S_X, S_W, S_O = 4, 6, 8
SRD_X, SRD_O = 12, 16
SRD_W = [20, 24, 28]
S_WAVE, S_T0, S_N0, S_TMP, S_TMP2 = 32, 33, 34, 35, 36
S_WOFF = 37
S_MW = 38
S_MX = 39
S_C1, S_C2 = 40, 42
S_XO = [44, 45, 46, 47]

V_XG = [2, 3, 4, 5]
V_XG16 = 6
V_WG = 7
V_WR = [8, 9]
V_XR = [[10, 11, 12, 13], [14, 15, 16, 17]]
V_OUT = 18
V_T = 20
ACC = 32
WF = [96, 108]
XF = [120, 144]
V_E = 168
NV = 200


def gen():
    a = Asm()
    a(f"""
    s_cmp_ge_u32 s2, 256
    s_cbranch_scc1 L_end
    s_load_dwordx4 s[{S_X}:{S_X+3}], s[0:1], 0
    s_load_dwordx2 s[{S_O}:{S_O+1}], s[0:1], 16
    v_lshrrev_b32 v1, 6, v0
    v_and_b32 v0, 63, v0
    v_readfirstlane_b32 s{S_WAVE}, v1
    s_and_b32 s{S_TMP}, s2, 7
    s_lshr_b32 s{S_TMP2}, s2, 3
    s_and_b32 s{S_N0}, s{S_TMP2}, 3
    s_lshr_b32 s{S_TMP2}, s{S_TMP2}, 2
    s_lshl_b32 s{S_TMP}, s{S_TMP}, 3
    s_add_u32 s{S_TMP}, s{S_TMP}, s{S_TMP2}
    s_and_b32 s{S_T0}, s{S_TMP}, 31
    s_mul_i32 s{S_T0}, s{S_T0}, 125
    s_lshr_b32 s{S_TMP}, s{S_TMP}, 5
    s_mul_i32 s{S_TMP}, s{S_TMP}, 2048000
    s_lshl_b32 s{S_N0}, s{S_N0}, 7
    """)
    t = V_T
    a(f"""
    v_lshrrev_b32 v{t}, 3, v0
    s_lshl_b32 s{S_TMP2}, s{S_WAVE}, 3
    s_add_u32 s{S_TMP2}, s{S_TMP2}, s{S_T0}
    s_sub_u32 s{S_TMP2}, s{S_TMP2}, 4
    v_add_u32 v{t}, s{S_TMP2}, v{t}
    v_lshlrev_b32 v{t}, 9, v{t}
    v_and_b32 v{t+1}, 7, v0
    v_xor_b32 v{t+2}, s{S_WAVE}, v{t+1}
    v_xor_b32 v{t+3}, 4, v{t+2}
    v_lshl_add_u32 v{V_XG[0]}, v{t+2}, 4, v{t}
    v_lshl_add_u32 v{V_XG[1]}, v{t+3}, 4, v{t}
    v_add_u32 v{V_XG[1]}, {32*512}, v{V_XG[1]}
    v_add_u32 v{V_XG[2]}, {64*512}, v{V_XG[0]}
    v_add_u32 v{V_XG[3]}, {64*512}, v{V_XG[1]}
    s_add_u32 s{S_TMP2}, s{S_T0}, 124
    v_lshrrev_b32 v{t}, 3, v0
    v_add_u32 v{t}, s{S_TMP2}, v{t}
    v_lshlrev_b32 v{t}, 9, v{t}
    v_lshl_add_u32 v{V_XG16}, v{t+1}, 4, v{t}
    s_lshl_b32 s{S_TMP2}, s{S_WAVE}, 7
    v_add_u32 v{V_XG16}, s{S_TMP2}, v{V_XG16}
    """)
    a(f"""
    v_lshrrev_b32 v{t}, 4, v0
    v_lshlrev_b32 v{t+1}, 1, v{t}
    v_and_b32 v{t+2}, 15, v0
    v_xor_b32 v{t+2}, v{t+1}, v{t+2}
    v_lshrrev_b32 v{t+3}, 3, v{t+2}
    v_and_b32 v{t+2}, 7, v{t+2}
    v_lshlrev_b32 v{t+2}, 4, v{t+2}
    v_lshl_add_u32 v{t+2}, v{t+3}, 9, v{t+2}
    v_lshl_add_u32 v{t+2}, v{t}, 10, v{t+2}
    s_lshl_b32 s{S_TMP2}, s{S_WAVE}, 12
    s_add_u32 s{S_TMP2}, s{S_TMP2}, s{S_N0}
    v_add_u32 v{V_WG}, s{S_TMP2}, v{t+2}
    s_mul_i32 s{S_MW}, s{S_WAVE}, 3072
    s_add_u32 s{S_MW}, s{S_MW}, {WBASE}
    s_lshl_b32 s{S_MX}, s{S_WAVE}, 10
    s_mov_b32 s{S_XO[0]}, 0
    s_mov_b32 s{S_XO[1]}, 128
    s_mov_b32 s{S_XO[2]}, 256
    s_mov_b32 s{S_XO[3]}, 384
    s_waitcnt lgkmcnt(0)
    s_add_u32 s{SRD_X}, s{S_X}, s{S_TMP}
    s_addc_u32 s{SRD_X+1}, s{S_X+1}, 0
    s_mov_b32 s{SRD_X+2}, 2048000
    s_mov_b32 s{SRD_X+3}, 0x20000
    """)
    for i in range(3):
        off = i * 262144 - i * 1024
        a(f"""
        s_add_u32 s{SRD_W[i]}, s{S_W}, {off}
        s_addc_u32 s{SRD_W[i]+1}, s{S_W+1}, 0
        s_mov_b32 s{SRD_W[i]+2}, {786432 - off}
        s_mov_b32 s{SRD_W[i]+3}, 0x20000
        """)

    def dma_x16():
        a(f"""
        s_mul_i32 s{S_TMP2}, s{S_WAVE}, {XSL}
        s_add_u32 m0, s{S_TMP2}, {XBASE + 16*1024}
        s_mov_b64 exec, 0xff
        """)
        a.vmem(f"buffer_load_dwordx4 v{V_XG16}, s[{SRD_X}:{SRD_X+3}], 0 offen lds", "x16")
        a("s_mov_b64 exec, -1")

    def dma_x(ds, q):
        a(f"s_add_u32 m0, s{S_MX}, {XBASE + ds*XSL + q*4096}")
        a("s_nop 0")
        a.vmem(f"buffer_load_dwordx4 v{V_XG[q]}, s[{SRD_X}:{SRD_X+3}], s{S_XO[ds]} offen lds", f"x{ds}")

    def dma_w_setup(s):
        a(f"s_add_u32 m0, s{S_MW}, {(s % NSLOT) * WSL}")
        a(f"s_mov_b32 s{S_WOFF}, {s * 16 * 1024}")

    def dma_w(s, i):
        off = f" offset:{i*1024}" if i else ""
        a.vmem(f"buffer_load_dwordx4 v{V_WG}, s[{SRD_W[i]}:{SRD_W[i]+3}], s{S_WOFF} offen{off} lds", f"w{s}")

    dma_x16()
    for q in range(4):
        dma_x(0, q)
    for s in range(NSLOT):
        if s == 4:
            for q in range(4):
                dma_x(1, q)
        dma_w_setup(s)
        for i in range(3):
            dma_w(s, i)

    a(f"""
    s_add_u32 s{SRD_O}, s{S_O}, s{S_TMP}
    s_addc_u32 s{SRD_O+1}, s{S_O+1}, 0
    s_add_u32 s{SRD_O+2}, s{S_T0}, 125
    s_lshl_b32 s{SRD_O+2}, s{SRD_O+2}, 9
    s_mov_b32 s{SRD_O+3}, 0x20000
    s_mov_b32 s{S_C1}, 0x4038aa3b
    s_mov_b32 s{S_C1+1}, 0x4038aa3b
    s_mov_b32 s{S_C2}, 0xbfb8aa3b
    s_mov_b32 s{S_C2+1}, 0xbfb8aa3b
    """)
    a(f"""
    v_lshrrev_b32 v{t}, 5, v0
    v_mul_u32_u24 v{t}, {2*3072}, v{t}
    v_bfe_u32 v{t+1}, v0, 2, 2
    v_lshl_add_u32 v{t}, v{t+1}, 8, v{t}
    v_bfe_u32 v{t+2}, v0, 4, 1
    v_lshlrev_b32 v{t+2}, 3, v{t+2}
    v_and_b32 v{t+3}, 1, v0
    v_add_u32 v{t+2}, v{t+2}, v{t+3}
    s_lshl_b32 s{S_TMP2}, s{S_WAVE}, 1
    v_add_u32 v{t+2}, s{S_TMP2}, v{t+2}
    v_lshlrev_b32 v{t+1}, 1, v{t+1}
    v_xor_b32 v{t+2}, v{t+1}, v{t+2}
    v_lshl_add_u32 v{t}, v{t+2}, 4, v{t}
    v_bfe_u32 v{t+3}, v0, 1, 1
    v_lshl_add_u32 v{t}, v{t+3}, 3, v{t}
    v_add_u32 v{V_WR[0]}, {WBASE}, v{t}
    v_add_u32 v{V_WR[1]}, {WBASE + 4*WSL}, v{t}
    """)
    a(f"""
    v_and_b32 v{t}, 1, v0
    v_bfe_u32 v{t+1}, v0, 1, 4
    v_lshl_add_u32 v{t}, v{t+1}, 3, v{t}
    v_lshrrev_b32 v{t+2}, 5, v0
    v_lshlrev_b32 v{t+4}, 7, v{t}
    """)
    for hi in range(2):
        a(f"v_add_u32 v{t+3}, {hi}, v{t+1}")
        a(f"v_and_b32 v{t+3}, 7, v{t+3}")
        a(f"v_xor_b32 v{t+3}, v{t+2}, v{t+3}")
        for ss in range(4):
            a(f"v_xor_b32 v{t+5}, {2*ss}, v{t+3}")
            a(f"v_lshl_add_u32 v{V_XR[hi][ss]}, v{t+5}, 4, v{t+4}")
    a(f"""
    v_add_u32 v{t}, s{S_T0}, v{t}
    v_lshlrev_b32 v{t}, 9, v{t}
    v_lshl_add_u32 v{t}, v{t+2}, 4, v{t}
    s_lshl_b32 s{S_TMP2}, s{S_WAVE}, 5
    s_add_u32 s{S_TMP2}, s{S_TMP2}, s{S_N0}
    v_add_u32 v{V_OUT}, s{S_TMP2}, v{t}
    """)

    def reads(s):
        b = s & 1
        slot = s % NSLOT
        vw = V_WR[slot // 4]
        wo = (slot % 4) * WSL
        ds, ss = s >> 2, s & 3
        out = []

        def rw(i):
            for half in range(2):
                r = WF[b] + 4 * i + 2 * half
                out.append((f"ds_read_b64_tr_b16 v[{r}:{r+1}], v{vw} offset:{wo + half*3072 + i*1024}", f"r{s}"))

        def rx(jj):
            r = XF[b] + 4 * jj
            out.append((f"ds_read_b128 v[{r}:{r+3}], v{V_XR[jj // 4][ss]} offset:{XBASE + ds*XSL + jj*256}", f"r{s}"))
        rw(0); rx(0); rx(1); rx(2); rx(3); rw(1); rx(4); rw(2); rx(5)
        return out

    def need(s):
        return {f"w{s}", f"x{s >> 2}", "x16"}

    a.wait(vm=need(0))
    a("s_barrier")
    for ins, tag in reads(0):
        a.lds(ins, tag)

    for s in range(16):
        b = s & 1
        fill = []
        if s + 1 < 16:
            rd = reads(s + 1)
        else:
            rd = []
        dm = []
        if s + NSLOT < 16:
            n = s + NSLOT
            if n in (8, 12):
                dm += [("x", n >> 2, q) for q in range(4)]
            dm += [("wsetup", n, 0)] + [("w", n, i) for i in range(3)]
        a.wait(lg="all")
        m = 0
        for i in range(3):
            for j in range(4):
                c = f"v[{ACC+16*j}:{ACC+16*j+15}]"
                src = "0" if (s == 0 and i == 0) else c
                wa = WF[b] + 4 * i
                xb = XF[b] + 4 * (i + j)
                a(f"v_mfma_f32_32x32x16_bf16 {c}, v[{wa}:{wa+3}], v[{xb}:{xb+3}], {src}")
                if m == 0 and s + 1 < 16:
                    a.wait(vm=need(s + 1))
                    a("s_barrier")
                elif m >= 1:
                    for _ in range(2):
                        if rd:
                            ins, tag = rd.pop(0)
                            a.lds(ins, tag)
                    if m >= 4 and dm:
                        k, p0, p1 = dm.pop(0)
                        if k == "wsetup":
                            dma_w_setup(p0)
                            k, p0, p1 = dm.pop(0)
                        if k == "x":
                            dma_x(p0, p1)
                        else:
                            dma_w(p0, p1)
                m += 1
        assert not rd and not dm

    a("s_nop 9")
    for j in range(4):
        c = ACC + 16 * j
        e = V_E
        for k in range(0, 8, 2):
            a(f"v_pk_mul_f32 v[{c+k}:{c+k+1}], v[{c+k}:{c+k+1}], s[{S_C1}:{S_C1+1}]")
        for k in range(8, 16, 2):
            a(f"v_pk_mul_f32 v[{c+k}:{c+k+1}], v[{c+k}:{c+k+1}], s[{S_C2}:{S_C2+1}]")
        for k in range(16):
            a(f"v_exp_f32 v{c+k}, v{c+k}")
        for k in range(0, 16, 2):
            a(f"v_pk_add_f32 v[{c+k}:{c+k+1}], v[{c+k}:{c+k+1}], 1.0 op_sel_hi:[1,0]")
        for k in range(16):
            a(f"v_rcp_f32 v{c+k}, v{c+k}")
        for k in range(0, 8, 2):
            a(f"v_pk_fma_f32 v[{c+k}:{c+k+1}], v[{c+k}:{c+k+1}], -2.0, 1.0 op_sel_hi:[1,0,0]")
        for k in range(0, 8, 2):
            a(f"v_pk_mul_f32 v[{c+k}:{c+k+1}], v[{c+k}:{c+k+1}], v[{c+8+k}:{c+9+k}]")
        for k in range(4):
            a(f"v_cvt_pk_bf16_f32 v{e+4*j+k}, v{c+2*k}, v{c+2*k+1}")
        a.vmem(f"buffer_store_dwordx4 v[{e+4*j}:{e+4*j+3}], v{V_OUT}, s[{SRD_O}:{SRD_O+3}], 0 offen offset:{j*1024}", "st")
    a.label("L_end")
    a("s_endpgm")
    return wrap(a.text(), 256, 256, LDS, NV, NV)


if __name__ == "__main__":
    open(sys.argv[1], "w").write(gen())
```
